```python
import torch

def _softmax(x, axis=-1):
    return torch.softmax(x, dim=axis)

def _gelu(x):
    return torch.nn.functional.gelu(x, approximate='tanh')

def _silu(x):
    return torch.nn.functional.silu(x)

def _sigmoid(x):
    return torch.sigmoid(x)

def _layernorm(x, axis=-1, eps=1e-05):
    m = x.mean(dim=axis, keepdim=True)
    v = x.var(dim=axis, keepdim=True, unbiased=False)
    return (x - m) / torch.sqrt(v + eps)

def _scatter_add(tgt, idx, src, axis=0):
    return tgt.clone().index_add_(axis, idx, src)

def _segment_sum(src, seg, n):
    out = torch.zeros((n,) + src.shape[1:], dtype=src.dtype)
    return out.index_add_(0, seg, src)

def _pad(x, pw):
    flat = tuple((v for pair in reversed(pw) for v in pair))
    return torch.nn.functional.pad(x, flat)
kernel_name = 'interleave_layers__memory_aug_recurrent_mem_tr__glu_gated_geglu__prompt'

def setup_inputs():

    _w = lambda a: (lambda t: t.to(torch.bfloat16) if t.is_floating_point() else t)(torch.as_tensor(a))

    def _A_setup():
        B, S, Dm = (1, 2048, 576)
        H, Dh = (32, 128)
        M, seg = (8, 32)
        seg = min(seg, S)
        S = S // seg * seg
        return {'x': _w((lambda *s: torch.randn(*s, dtype=torch.bfloat16) * 0.05)(B, S, Dm)), 'mem0': _w((lambda *s: torch.randn(*s, dtype=torch.bfloat16) * 0.2)(B, M, Dm)), 'Wq': _w((lambda *s: torch.randn(*s, dtype=torch.bfloat16) * 1.6)(Dm, H, Dh) * Dm ** (-0.5)), 'Wk': _w((lambda *s: torch.randn(*s, dtype=torch.bfloat16) * 1.6)(Dm, H, Dh) * Dm ** (-0.5)), 'Wv': _w((lambda *s: torch.randn(*s, dtype=torch.bfloat16) * 0.2)(Dm, H, Dh) * Dm ** (-0.5)), 'Wo': _w((lambda *s: torch.randn(*s, dtype=torch.bfloat16) * 0.2)(H, Dh, Dm) * (H * Dh) ** (-0.5)), 'seg_len': seg}
    _A_in = _A_setup()

    def _B_setup():
        B, S, Dm, Df = (1, 2048, 576, 4608)
        return {'x': _w((lambda *s: torch.randn(*s, dtype=torch.bfloat16) * 0.05)(B, S, Dm)), 'w_gate': _w((lambda *s: torch.randn(*s, dtype=torch.bfloat16) * 0.4)(Dm, Df) * Dm ** (-0.5)), 'w_up': _w((lambda *s: torch.randn(*s, dtype=torch.bfloat16) * 0.4)(Dm, Df) * Dm ** (-0.5)), 'w_down': _w((lambda *s: torch.randn(*s, dtype=torch.bfloat16) * 0.4)(Df, Dm) * Df ** (-0.5))}
    _B_in = _B_setup()
    return {'A_x': _A_in['x'], 'A_mem0': _A_in['mem0'], 'A_Wq': _A_in['Wq'], 'A_Wk': _A_in['Wk'], 'A_Wv': _A_in['Wv'], 'A_Wo': _A_in['Wo'], 'A_seg_len': _A_in['seg_len'], 'B_x': _B_in['x'], 'B_w_gate': _B_in['w_gate'], 'B_w_up': _B_in['w_up'], 'B_w_down': _B_in['w_down']}

def reference(A_x, A_mem0, A_Wq, A_Wk, A_Wv, A_Wo, A_seg_len, B_x, B_w_gate, B_w_up, B_w_down):

    def _A_ref(x, mem0, Wq, Wk, Wv, Wo, seg_len):
        B, S, Dm = x.shape
        H, Dh = (Wq.shape[1], Wq.shape[2])
        M = mem0.shape[1]
        scale = Dh ** (-0.5)
        n_seg = S // seg_len
        L = M + seg_len
        idx = torch.arange(L)
        mask = (idx[:, None] < M) | (idx[:, None] >= idx[None, :])
        mem = mem0
        outs = []
        for s in range(n_seg):
            xs = x[:, s * seg_len:(s + 1) * seg_len, :].clone()
            h = torch.concatenate([mem, xs], axis=1)
            q = torch.einsum('btd,dhe->bhte', h, Wq)
            k = torch.einsum('btd,dhe->bhte', h, Wk)
            v = torch.einsum('btd,dhe->bhte', h, Wv)
            scores = torch.einsum('bhqe,bhke->bhqk', q, k) * scale
            scores = torch.where(mask[None, None], scores, -1000000000.0)
            p = _softmax(scores, axis=-1)
            o = torch.einsum('bhqk,bhke->bhqe', p, v)
            o = torch.einsum('bhte,hed->btd', o, Wo)
            mem = o[:, :M, :].clone()
            outs.append(o[:, M:, :])
        return torch.concatenate(outs, axis=1)

    def _B_ref(x, w_gate, w_up, w_down):
        g = torch.einsum('bsd,df->bsf', x, w_gate)
        u = torch.einsum('bsd,df->bsf', x, w_up)
        h = _gelu(g) * u
        return torch.einsum('bsf,fd->bsd', h, w_down)
    x = A_x
    x = x + _A_ref(_layernorm(x, axis=-1), A_mem0, A_Wq, A_Wk, A_Wv, A_Wo, A_seg_len)
    x = x + _B_ref(_layernorm(x, axis=-1), B_w_gate, B_w_up, B_w_down)
    x = x + _A_ref(_layernorm(x, axis=-1), A_mem0, A_Wq, A_Wk, A_Wv, A_Wo, A_seg_len)
    x = x + _B_ref(_layernorm(x, axis=-1), B_w_gate, B_w_up, B_w_down)
    return x
```

```python
import re

VCC = [('s', 106), ('s', 107)]
EXEC = [('s', 126), ('s', 127)]
M0 = [('s', 124)]
SCC = [('scc', 0)]

_reg_re = re.compile(r'^(-|abs\(|\|)?([vas])(\d+)\)?\|?$')
_rng_re = re.compile(r'^(-|abs\(|\|)?([vas])\[(\d+):(\d+)\]\)?\|?$')


def regs_of(tok):
    tok = tok.strip()
    if tok == 'vcc':
        return list(VCC)
    if tok == 'vcc_lo':
        return [VCC[0]]
    if tok == 'vcc_hi':
        return [VCC[1]]
    if tok == 'exec':
        return list(EXEC)
    if tok == 'exec_lo':
        return [EXEC[0]]
    if tok == 'exec_hi':
        return [EXEC[1]]
    if tok == 'm0':
        return list(M0)
    m = _reg_re.match(tok)
    if m:
        return [(m.group(2), int(m.group(3)))]
    m = _rng_re.match(tok)
    if m:
        return [(m.group(2), i) for i in range(int(m.group(3)), int(m.group(4)) + 1)]
    return []


TRANS = ('v_exp_f32', 'v_log_f32', 'v_rcp_f32', 'v_rsq_f32', 'v_sqrt_f32', 'v_sin_f32', 'v_cos_f32',
         'v_rcp_iflag_f32')


class Ins:
    __slots__ = ('text', 'mn', 'ops', 'mods', 'kind', 'dst', 'src', 'label', 'target', 'tok', 'passes',
                 'srcA', 'srcB', 'srcC', 'dpp', 'wide_store', 'data', 'ldsdma', 'comment', 'waitvm', 'waitlgkm',
                 'noflush')

    def __init__(self):
        self.label = None
        self.target = None
        self.tok = None
        self.passes = 0
        self.srcA = self.srcB = self.srcC = []
        self.dpp = False
        self.wide_store = False
        self.data = []
        self.ldsdma = False
        self.dst = []
        self.src = []
        self.kind = 'other'
        self.waitvm = None
        self.waitlgkm = None
        self.noflush = False
        self.mn = ''


def split_ops(rest):
    parts = []
    depth = 0
    cur = ''
    for ch in rest:
        if ch in '([':
            depth += 1
        if ch in ')]':
            depth -= 1
        if ch == ',' and depth == 0:
            parts.append(cur.strip())
            cur = ''
        else:
            cur += ch
    if cur.strip():
        parts.append(cur.strip())
    mods = []
    if parts:
        last = parts[-1].split()
        parts[-1] = last[0]
        mods = last[1:]
    return parts, mods


def parse(text):
    i = Ins()
    i.text = text
    t = text.split(';')[0].strip()
    sp = t.split(None, 1)
    mn = sp[0]
    rest = sp[1] if len(sp) > 1 else ''
    i.mn = mn
    if mn == 's_waitcnt':
        i.kind = 'wait'
        m = re.search(r'vmcnt\((\d+)\)', rest)
        i.waitvm = int(m.group(1)) if m else None
        m = re.search(r'lgkmcnt\((\d+)\)', rest)
        i.waitlgkm = int(m.group(1)) if m else None
        i.ops, i.mods = [], []
        return i
    ops, mods = split_ops(rest)
    i.ops, i.mods = ops, mods
    R = [regs_of(o) for o in ops]
    allr = lambda k: [r for x in R[k:] for r in x]
    if mn.startswith('v_mfma'):
        i.kind = 'mfma'
        i.dst = R[0]
        i.srcA, i.srcB, i.srcC = R[1], R[2], R[3]
        i.src = R[1] + R[2] + R[3]
        if '32x32x16' in mn or '32x32x8' in mn:
            i.passes = 8
        elif '16x16x32' in mn or '16x16x16' in mn:
            i.passes = 4
        else:
            raise ValueError('unknown mfma ' + mn)
    elif mn.startswith('v_'):
        i.kind = 'valu'
        base = re.sub(r'_(e32|e64|dpp|sdwa)$', '', mn)
        i.dpp = mn.endswith('_dpp') or any(m.startswith(('row_', 'quad_perm', 'wave_')) for m in mods)
        if base == 'v_nop':
            pass
        elif base.startswith('v_cmpx'):
            i.dst = R[0] + EXEC
            i.src = allr(1)
        elif base.startswith('v_cmp'):
            i.dst = R[0]
            i.src = allr(1)
        elif base in ('v_add_co_u32', 'v_sub_co_u32', 'v_subrev_co_u32', 'v_addc_co_u32', 'v_subb_co_u32',
                      'v_mad_u64_u32', 'v_div_scale_f32'):
            i.dst = R[0] + R[1]
            i.src = allr(2)
        elif base in ('v_permlane32_swap_b32', 'v_permlane16_swap_b32', 'v_swap_b32'):
            i.dst = R[0] + R[1]
            i.src = R[0] + R[1]
        elif base in ('v_fmac_f32', 'v_dot2c_f32_bf16', 'v_writelane_b32', 'v_pk_fmac_f16'):
            i.dst = R[0]
            i.src = allr(0)
        else:
            i.dst = R[0]
            i.src = allr(1)
            if i.dpp:
                i.src = i.src + R[0]
    elif mn.startswith(('buffer_', 'global_')):
        i.kind = 'vmem'
        if mn.startswith(('buffer_wbl2', 'buffer_inv')):
            pass
        elif 'lds' in mods or '_lds_' in mn:
            i.ldsdma = True
            i.src = allr(0) + M0
        elif '_load' in mn:
            i.dst = R[0]
            i.src = allr(1)
            if 'd16' in mn:
                i.src = i.src + R[0]
        elif '_store' in mn:
            i.src = allr(0)
            i.data = R[0] if mn.startswith('buffer') else R[1]
            i.wide_store = mn.endswith(('x3', 'x4'))
        elif '_atomic' in mn:
            if mn.startswith('buffer'):
                i.src = allr(0)
                if 'sc0' in mods:
                    i.dst = R[0]
            else:
                if 'sc0' in mods:
                    i.dst = R[0]
                    i.src = allr(1)
                else:
                    i.src = allr(0)
        else:
            raise ValueError('unknown vmem ' + text)
    elif mn.startswith('ds_'):
        i.kind = 'ds'
        if mn.startswith(('ds_read', 'ds_swizzle', 'ds_bpermute', 'ds_permute')) or '_rtn' in mn:
            i.dst = R[0]
            i.src = allr(1)
        else:
            i.src = allr(0)
    elif mn.startswith(('s_load', 's_memtime', 's_memrealtime', 's_buffer_load')):
        i.kind = 'smem'
        i.dst = R[0]
        i.src = allr(1)
    elif mn in ('s_branch',) or mn.startswith('s_cbranch'):
        i.kind = 'branch'
        i.target = ops[0]
        if 'vcc' in mn:
            i.src = list(VCC)
        if 'exec' in mn:
            i.src = list(EXEC)
    elif mn == 's_endpgm':
        i.kind = 'end'
    elif mn == 's_nop':
        i.kind = 'nop'
    elif mn.startswith('s_'):
        i.kind = 'salu'
        if mn.startswith(('s_cmp', 's_bitcmp', 's_barrier', 's_sleep', 's_setprio', 's_setreg')):
            i.src = allr(0)
        elif 'saveexec' in mn:
            i.dst = R[0] + EXEC
            i.src = allr(1) + EXEC
        elif mn in ('s_addk_i32', 's_mulk_i32'):
            i.dst = R[0]
            i.src = R[0]
        else:
            i.dst = R[0]
            i.src = allr(1)
    else:
        raise ValueError('unknown instruction ' + text)
    return i


class Asm:
    def __init__(self):
        self.ins = []
        self.ntok = 0
        self.nlab = 0

    def __call__(self, text, tok=False, noflush=False):
        t = None
        for line in text.strip().split('\n'):
            line = line.strip()
            if not line or line.startswith(';'):
                continue
            if line.endswith(':'):
                self.label(line[:-1])
                continue
            i = parse(line)
            i.noflush = noflush
            if tok:
                self.ntok += 1
                t = ('tok', self.ntok)
                i.tok = t
            self.ins.append(i)
        return t

    def label(self, name):
        i = Ins()
        i.kind = 'label'
        i.label = name
        i.text = name + ':'
        self.ins.append(i)

    def newlabel(self, base='L'):
        self.nlab += 1
        return f'{base}_{self.nlab}'

    def wait_tok(self, *toks):
        i = Ins()
        i.kind = 'pseudo'
        i.text = ''
        i.src = [t for t in toks if t is not None]
        self.ins.append(i)

    def raw(self, text):
        i = Ins()
        i.kind = 'raw'
        i.text = text
        self.ins.append(i)

    def comment(self, text):
        self.raw('; ' + text)

    def _insert_waits(self, entry_labels):
        ins = self.ins
        n = len(ins)
        lab = {x.label: k for k, x in enumerate(ins) if x.kind == 'label'}
        need_vm = {}
        need_lg = {}

        def canon(q):
            k = 0
            while k < len(q) and not q[k]:
                k += 1
            return q[k:]

        changed = True
        rounds = 0
        while changed:
            changed = False
            rounds += 1
            assert rounds < 50
            seen = set()
            work = [(lab[e], (), ()) for e in entry_labels]
            steps = 0
            while work:
                pc, vm, lg = work.pop()
                while True:
                    x = ins[pc]
                    if x.kind == 'label':
                        key = (pc, vm, lg)
                        if key in seen:
                            break
                        seen.add(key)
                        if len(seen) > 200000:
                            raise RuntimeError('state explosion in wait insertion near ' + x.label)
                    steps += 1
                    if x.kind in ('label', 'raw'):
                        pc += 1
                        continue
                    touched = set(x.src) | set(x.dst)
                    if vm and touched:
                        for k in range(len(vm) - 1, -1, -1):
                            if vm[k] and (vm[k] & touched):
                                if x.kind == 'vmem' and not (vm[k] & set(x.src)):
                                    continue
                                c = min(len(vm) - 1 - k, 63)
                                if need_vm.get(pc, 99) > c:
                                    need_vm[pc] = c
                                    changed = True
                                break
                    if lg and touched:
                        has_smem = any(e and ('smem', 0) in e for e in lg)
                        for k in range(len(lg) - 1, -1, -1):
                            if lg[k] and (lg[k] & touched):
                                if x.kind == 'ds' and not has_smem and not (lg[k] & set(x.src)):
                                    continue
                                c = 0 if has_smem else min(len(lg) - 1 - k, 15)
                                if need_lg.get(pc, 99) > c:
                                    need_lg[pc] = c
                                    changed = True
                                break
                    wv = need_vm.get(pc)
                    wl = need_lg.get(pc)
                    if x.kind == 'wait':
                        wv, wl = x.waitvm, x.waitlgkm
                    if wv is not None and len(vm) > wv:
                        vm = canon(vm[len(vm) - wv:] if wv else ())
                    if wl is not None and len(lg) > wl:
                        has_smem = any(e and ('smem', 0) in e for e in lg)
                        if wl == 0:
                            lg = ()
                        elif not has_smem:
                            lg = canon(lg[len(lg) - wl:])
                    if x.kind == 'vmem':
                        d = frozenset(x.dst + ([x.tok] if x.tok else []))
                        vm = canon(vm + (d,))
                        if len(vm) > 64:
                            vm = canon(vm[-64:])
                    elif x.kind == 'ds':
                        d = frozenset(x.dst + ([x.tok] if x.tok else []))
                        lg = canon(lg + (d,))
                        if len(lg) > 16 and not any(e and ('smem', 0) in e for e in lg):
                            lg = canon(lg[-16:])
                    elif x.kind == 'smem':
                        d = frozenset(x.dst + [('smem', 0)])
                        lg = lg + (d,)
                    elif x.kind == 'end':
                        break
                    elif x.kind == 'branch':
                        tgt = lab[x.target]
                        if x.mn == 's_branch':
                            pc = tgt
                            continue
                        work.append((tgt, vm, lg))
                    pc += 1
        out = []
        for k, x in enumerate(ins):
            if k in need_vm or k in need_lg:
                s = 's_waitcnt'
                if k in need_vm:
                    s += f' vmcnt({need_vm[k]})'
                if k in need_lg:
                    s += f' lgkmcnt({need_lg[k]})'
                out.append(parse(s))
            if x.kind != 'pseudo':
                out.append(x)
        self.ins = out

    def _insert_nops(self):
        out = []
        win = []
        XD = {4: 8, 8: 12}
        XC = {4: 6, 8: 10}
        XW = {4: 3, 8: 7}

        def adv(n):
            for w in win:
                w[1] += n
            while win and win[0][1] > 24:
                win.pop(0)

        def isv(r):
            return r[0] in 'va'

        for x in self.ins:
            if x.kind in ('label', 'raw'):
                out.append(x)
                continue
            need = 0
            src = set(x.src)
            dst = set(x.dst)
            for p, d in win:
                req = 0
                pd = set(p.dst)
                if x.kind == 'branch' and not x.noflush:
                    if p.kind == 'mfma':
                        req = XD[p.passes] - 1
                    elif p.kind == 'valu' and pd:
                        if any(r[0] == 's' and r not in VCC for r in pd):
                            req = 5 - 1
                        else:
                            req = 2 - 1
                    elif p.kind == 'vmem' and p.wide_store:
                        req = 2 - 1
                elif p.kind == 'mfma':
                    if x.kind == 'mfma':
                        if pd & (set(x.srcA) | set(x.srcB)):
                            req = max(req, XD[p.passes])
                        if pd & set(x.srcC):
                            if p.dst == x.srcC and p.passes == x.passes:
                                pass
                            else:
                                req = max(req, XC[p.passes])
                        elif pd & dst:
                            req = max(req, XC[p.passes])
                    elif x.kind in ('valu', 'vmem', 'ds'):
                        if pd & (src | dst):
                            req = max(req, XD[p.passes])
                        if x.kind == 'valu' and set(p.srcC) & dst:
                            req = max(req, XW[p.passes])
                elif p.kind == 'valu':
                    pv = {r for r in pd if isv(r)}
                    ps = {r for r in pd if r[0] == 's'}
                    if x.kind == 'mfma':
                        if pv & src:
                            req = max(req, 2)
                        if ps & set(EXEC):
                            req = max(req, 4)
                    elif x.kind == 'valu':
                        xb = x.mn
                        if pv & src:
                            if x.dpp or xb.startswith('v_permlane'):
                                req = max(req, 2)
                            if xb.startswith(('v_readlane', 'v_readfirstlane')):
                                req = max(req, 1)
                            if p.mn.startswith(TRANS) and not xb.startswith(TRANS):
                                req = max(req, 1)
                            if 'sdwa' in p.mn or any(m.startswith('op_sel') for m in p.mods):
                                req = max(req, 1)
                        if ps & src:
                            req = max(req, 2)
                            if xb.startswith(('v_readlane', 'v_writelane', 'v_div_fmas')):
                                req = max(req, 4)
                        if ps & set(EXEC):
                            if x.dpp:
                                req = max(req, 5)
                            if xb.startswith(('v_readlane', 'v_readfirstlane', 'v_writelane', 'v_permlane')):
                                req = max(req, 4)
                    elif x.kind == 'vmem':
                        if ps & src:
                            req = max(req, 5)
                    elif x.kind in ('salu', 'smem', 'branch'):
                        if ps & src:
                            req = max(req, 1)
                elif p.kind == 'vmem' and p.wide_store:
                    if set(p.data) & dst:
                        req = max(req, 2 if x.kind in ('valu', 'mfma') else 1)
                elif p.kind == 'salu':
                    if set(M0) & pd and x.kind == 'vmem' and x.ldsdma:
                        req = max(req, 1)
                need = max(need, req - d)
            while need > 0:
                k = min(need, 16)
                out.append(parse(f's_nop {k - 1}'))
                adv(k)
                need -= k
            out.append(x)
            if x.kind == 'nop':
                adv(int(x.ops[0], 0) + 1)
            else:
                adv(1)
                win.append([x, 0])
        self.ins = out

    def finish(self, entry_labels):
        self._insert_waits(entry_labels)
        self._insert_nops()
        lines = []
        for x in self.ins:
            if x.kind == 'label':
                lines.append(x.text)
            elif x.kind == 'raw':
                lines.append(x.text)
            else:
                lines.append('  ' + x.text)
        return '\n'.join(lines) + '\n'


def vr(base, n=1, f='v'):
    return f'{f}{base}' if n == 1 else f'{f}[{base}:{base + n - 1}]'


def sr(base, n=1):
    return vr(base, n, 's')


def kernel_desc(name, vgpr=512, accum=256, sgpr=102):
    return f'''.amdhsa_kernel {name}
  .amdhsa_next_free_vgpr {vgpr}
  .amdhsa_next_free_sgpr {sgpr}
  .amdhsa_accum_offset {accum}
  .amdhsa_group_segment_fixed_size 0
  .amdhsa_kernarg_size 112
  .amdhsa_user_sgpr_count 2
  .amdhsa_user_sgpr_kernarg_segment_ptr 1
  .amdhsa_system_sgpr_workgroup_id_x 1
.end_amdhsa_kernel
'''
```

```python
NSEG = 64
LAG = 11
NSTEP = NSEG + LAG
FLAGS = 0x0
DBGW = 0x10000
PS = 18560
CH_P = 0x100000
CH_M = 0x1A0000
PR = 0x200000
XS = 41472
XB = 0x600000
YB = 0xC00000
KMB = 0x1200000
KVB = 0x2800000
OB = 0x6800000
HB = 0x8800000
WS_END = HB + 2*64*294912
assert XB + 2*64*XS <= YB and YB + 2*64*XS <= KMB and KMB + 80*32*8192 <= KVB
assert WS_END <= 0x10000000
F_X = 0
F_Y = 128
F_O = 256
F_H = 384
F_KV = 640
F_C = 896
NFLAG = 1024
```

```python
import sys, math
from asmlib import *
from layout import *

NAME = 'interleave_layers__memory_aug_recurrent_mem_tr__glu_gated_geglu__prompt'
K = NAME + '_kernel'
MF = 'v_mfma_f32_16x16x32_bf16'
MF16 = 'v_mfma_f32_16x16x16_bf16'
BUDGET = 1 << 20

def q(b, n=4):
    return vr(b, n) if b < 256 else vr(b - 256, n, 'a')

def srd(a, sb, karg_off, nbytes):
    a(f's_load_dwordx2 s[{sb}:{sb+1}], s[0:1], {karg_off}')
    a(f's_mov_b32 s{sb+2}, {nbytes}')
    a(f's_mov_b32 s{sb+3}, 0x20000')
    a(f's_and_b32 s{sb+1}, s{sb+1}, 0xffff')

def spin_tail(a, label):
    a(f'''
    s_sub_u32 s100, s100, 1
    s_cbranch_scc0 {label}
    s_branch L_end
    ''')

def prologue(a):
    a.label(K)
    a(f'''
    s_cmp_ge_u32 s2, 256
    s_cbranch_scc1 L_end
    s_load_dwordx4 s[4:7], s[0:1], 96
    s_getreg_b32 s8, hwreg(HW_REG_XCC_ID)
    s_and_b32 s8, s8, 7
    v_lshrrev_b32 v1, 6, v0
    v_readfirstlane_b32 s9, v1
    v_and_b32 v63, 63, v0
    s_mov_b32 s100, {BUDGET}
    s_mov_b32 s12, s6
    s_and_b32 s13, s7, 0xffff
    s_mov_b32 s14, 0x10000000
    s_mov_b32 s15, 0x20000
    s_cmp_lg_u32 s9, 0
    s_cbranch_scc1 L_claimed
    s_mov_b64 exec, 1
    s_lshl_b32 s10, s8, 2
    v_mov_b32 v3, s10
    v_mov_b32 v4, 1
    global_atomic_add v5, v3, v4, s[4:5] sc0 sc1
    v_mov_b32 v3, 0
    ds_write_b32 v3, v5
    s_mov_b64 exec, -1
    L_claimed:
    s_waitcnt vmcnt(0) lgkmcnt(0)
    s_barrier
    v_mov_b32 v3, 0
    ds_read_b32 v5, v3
    v_readfirstlane_b32 s10, v5
    s_and_b32 s10, s10, 31
    s_barrier
    ''')

def arrive(a):
    L = a.newlabel('L_arr')
    a(f'''
    s_waitcnt vmcnt(0)
    s_barrier
    s_cmp_lg_u32 s9, 0
    s_cbranch_scc1 {L}
    s_mov_b64 exec, 1
    v_mov_b32 v60, 64
    v_mov_b32 v61, 1
    global_atomic_add v60, v61, s[4:5] sc1
    s_mov_b64 exec, -1
    {L}:
    ''')

def wait_arrivals(a, n, t0=60):
    L = a.newlabel('L_wa')
    a(f'''
    v_mov_b32 v{t0}, 64
    s_mov_b64 exec, 1
    {L}:
    global_load_dword v{t0+1}, v{t0}, s[4:5] sc1
    v_readfirstlane_b32 s98, v{t0+1}
    s_cmp_ge_u32 s98, {n}
    s_cbranch_scc1 {L}d
    s_sleep 8
    ''')
    spin_tail(a, L)
    a(f'''
    {L}d:
    s_mov_b64 exec, -1
    ''')

class Loader:
    def __init__(self, a, nslots, s_area, v_tr, tmp):
        self.a, self.nslots, self.s_area, self.v_tr, self.tmp = a, nslots, s_area, v_tr, tmp

    def run(self, blocks, v_lin=None):
        a = self.a
        n = len(blocks)
        dtok = [None] * n
        rtok = [None] * n
        def dma(i):
            b = blocks[i]
            slot = i % self.nslots
            for hf in range(2):
                a(f's_add_u32 m0, s{self.s_area}, {slot*2048 + hf*1024}')
                a(f's_add_u32 s99, s{b["sbase"]}, {b["off"] + hf*16*b["pitch"]}')
                dtok[i] = a(f'buffer_load_dwordx4 v{b["voff"]}, s[{b["srd"]}:{b["srd"]+3}], s99 offen lds', tok=True)
        depth = self.nslots - 1
        for i in range(min(depth, n)):
            dma(i)
        for i in range(n):
            b = blocks[i]
            slot = i % self.nslots
            a.wait_tok(dtok[i])
            o = slot * 2048
            vt = b.get('v_tr', self.v_tr)
            if b['dst'] == 'lds':
                t = self.tmp + 8 * (i % 2)
                dsts = [t, t + 4]
            else:
                dsts = b['dst']
            for ab, d in enumerate(dsts):
                a(f'ds_read_b64_tr_b16 {q(d, 2)}, v{vt} offset:{o + 8*ab}')
                rtok[i] = a(f'ds_read_b64_tr_b16 {q(d+2, 2)}, v{vt} offset:{o + 8*ab + 256}', tok=True)
            if b['dst'] == 'lds':
                a.wait_tok(rtok[i])
                a(f'ds_write_b128 v{v_lin}, {q(dsts[0])} offset:{o}')
                a(f'ds_write_b128 v{v_lin}, {q(dsts[1])} offset:{o + 1024}')
            if i + depth < n:
                if i >= 1:
                    a.wait_tok(rtok[i - 1])
                dma(i + depth)

def lane_consts_loader(a, v_tr, s_area, lane=63, t=60):
    a(f'''
    v_lshrrev_b32 v{t}, 4, v{lane}
    v_lshlrev_b32 v{v_tr}, 9, v{t}
    v_bfe_u32 v{t}, v{lane}, 2, 2
    v_lshl_add_u32 v{v_tr}, v{t}, 6, v{v_tr}
    v_and_b32 v{t}, 3, v{lane}
    v_lshl_add_u32 v{v_tr}, v{t}, 4, v{v_tr}
    v_add_u32 v{v_tr}, s{s_area}, v{v_tr}
    ''')

def dma_voff(a, dst, pitch, lane=63, t=60):
    a(f'''
    v_lshrrev_b32 v{t}, 2, v{lane}
    v_mul_u32_u24 v{dst}, {pitch}, v{t}
    v_and_b32 v{t}, 3, v{lane}
    v_lshl_add_u32 v{dst}, v{t}, 4, v{dst}
    ''')

def sel_matrix(a, dst, lane=63, t=60):
    a(f'''
    v_and_b32 v{t}, 15, v{lane}
    v_and_b32 v{t+1}, 1, v{t}
    v_lshlrev_b32 v{t+1}, 4, v{t+1}
    v_mov_b32 v{t+2}, 0x3f80
    v_lshlrev_b32 v{t+2}, v{t+1}, v{t+2}
    v_lshrrev_b32 v{t}, 1, v{t}
    ''')
    for d in range(4):
        a(f'v_cmp_eq_u32 vcc, {d}, v{t}')
        a(f'v_cndmask_b32 v{dst+d}, 0, v{t+2}, vcc')

def xreduce(a, op, m, t):
    for sw in ('v_permlane16_swap_b32', 'v_permlane32_swap_b32'):
        a(f'v_mov_b32 v{t}, v{m}')
        a(f'{sw} v{m}, v{t}')
        a(f'{op} v{m}, v{m}, v{t}')

TL_REGS = [70 + 2*i for i in range(10)] + [16 + 2*i for i in range(8)]
def stamp(a, opt, idx):
    pass

def tl(a, opt, idx):
    if opt.get('tl'):
        r = TL_REGS[idx]
        a.raw(f'  s_memtime s[{r}:{r+1}]')

def tl_dump(a, opt, s_step, s_idx4, tmp):
    if opt.get('tl'):
        L = a.newlabel('L_tl')
        a(f's_cmp_lg_u32 s{s_step}, {opt["tl"]}')
        a(f's_cbranch_scc1 {L}', noflush=True)
        a('s_waitcnt lgkmcnt(0)')
        a(f's_lshl_b32 s98, s{s_idx4}, 5\ns_add_u32 s98, s98, {DBGW + 0x8000}')
        a('s_mov_b64 exec, 1')
        for i, r in enumerate(TL_REGS):
            a(f'v_mov_b32 v{tmp}, s{r}')
            a(f'buffer_store_dword v{tmp}, off, s[12:15], s98 offset:{4*i}')
        a('s_mov_b64 exec, -1')
        a.label(L)

def delay(a, cyc):
    while cyc >= 4:
        k = min(cyc // 4, 16)
        a(f's_nop {k-1}')
        cyc -= 4*k

def chain_loop(a, opt, w, W):
    Wq, Wk, Wv, Wo, Wo4, OL, mem0_line = (W[k] for k in ('Wq', 'Wk', 'Wv', 'Wo', 'Wo4', 'OL', 'mem0_line'))
    QA = 12
    Q = [16 + 4*i for i in range(12)]
    L16, W1K, RED, PUB, LW, A1, A2, A3, SEL = 0, 1, 2, 3, 4, 5, 6, 7, 8
    MEM, SREG, OREG = 0, 18432, 26624
    dev = opt.get('total')
    LOOP = f'L_cloop{w}'
    GL = {0: Q[10], 1: Q[11], 2: QA, 3: Q[10], 4: Q[9]}
    has = lambda g: g < 4 or w < 2
    def gissue(g):
        if not has(g):
            return
        if g == 0:
            a(f'buffer_load_dwordx4 {q(GL[g])}, v{L16}, s[12:15], s42 offen sc1')
        else:
            a(f's_add_u32 s98, s42, {g*4096}')
            a(f'buffer_load_dwordx4 {q(GL[g])}, v{L16}, s[12:15], s98 offen sc1')
    def gwrite(g):
        return a(f'ds_write_b128 v{W1K}, {q(GL[g])} offset:{MEM + g*4096}', tok=True)
    def gcmp(g):
        a(f'v_cmp_eq_u32 vcc, -1, v{GL[g]}')
        a(f'v_cmp_eq_u32 s[94:95], -1, v{GL[g]+2}')
    tail = []
    def gbranch(g):
        Lr, Lb = a.newlabel('L_gr'), a.newlabel('L_gb')
        a('s_or_b64 vcc, vcc, s[94:95]')
        a(f's_cbranch_scc1 {Lr}', noflush=True)
        a.label(Lb)
        tail.append((Lr, Lb, g))
    MFR = lambda j: Q[4 + j % 3]
    def rdmem(j, dst):
        a(f'ds_read_b128 {q(dst)}, v{L16} offset:{MEM + j*1024}')
    def rdw(off, d0, d1):
        a(f'ds_read_b128 {q(d0)}, v{LW} offset:{off}')
        a(f'ds_read_b128 {q(d1)}, v{LW} offset:{off + 1024}')
    def packl(d, s0, s1):
        return [f'v_cvt_pk_bf16_f32 v{d}, v{s0}, v{s0+1}', f'v_cvt_pk_bf16_f32 v{d+1}, v{s0+2}, v{s0+3}',
                f'v_cvt_pk_bf16_f32 v{d+2}, v{s1}, v{s1+1}', f'v_cvt_pk_bf16_f32 v{d+3}, v{s1+2}, v{s1+3}']
    def pack(d, s0, s1):
        for l in packl(d, s0, s1):
            a(l)
    def g0_handle():
        tl(a, opt, 0)
        wt = gwrite(0)
        gcmp(0)
        gbranch(0)
        tl(a, opt, 1)
        for g in opt.get('gpre', (1, 4)):
            gissue(g)
        a.wait_tok(wt)
        a('s_barrier')
        rdmem(0, MFR(0)); rdmem(1, MFR(1)); rdmem(2, MFR(2))
    gissue(0)
    g0_handle()
    a.label(LOOP)
    tl(a, opt, 2)
    KX = {(0, 0): QA, (0, 1): Q[9], (1, 0): Q[11], (1, 1): Q[10]}
    def kxload(c, kt):
        a(f'buffer_load_dwordx4 {q(KX[(c, kt)])}, v{L16}, s[12:15], s{46+c} offen offset:{kt*1024} sc1')
    ev = {}
    def at(n, f):
        ev.setdefault(n, []).append(f)
    wtok = {}
    def chk(g, n):
        if not has(g):
            return
        at(n, lambda: wtok.__setitem__(g, gwrite(g)))
        at(n + 1, lambda: gcmp(g))
        at(n + 2, lambda: gbranch(g))
    def bar(gs, n):
        at(n, lambda: (a.wait_tok(*[wtok[g] for g in gs if has(g)]), a('s_barrier')))
    T = dict(g2=0, c1=6, b1=12, g3=4, c2=19, b2=27, c4=14, c3=32, b3=43)
    T.update(opt.get('T', {}))
    pre = opt.get('gpre', (1, 4))
    if 2 not in pre: at(T['g2'] + w, lambda: gissue(2))
    if 3 not in pre: at(T['g3'] + w, lambda: gissue(3))
    chk(1, T['c1'] + (w + 1) // 2); bar((1,), T['b1'])
    chk(4, T['c4'] + w)
    chk(2, T['c2'] + (w + 1) // 2); bar((2, 4), T['b2'])
    chk(3, T['c3'] + w); bar((3,), T['b3'])
    T['b4'] = T['b2']
    at(12, lambda: tl(a, opt, 3)); at(28, lambda: tl(a, opt, 4)); at(44, lambda: tl(a, opt, 5))
    first = {4: T['b1'], 8: T['b2'], 12: T['b3'], 16: T['b4']}
    for f in range(3, 18):
        n = max(4 * (f - 3) + 3, first.get(f // 4 * 4, 0))
        at(n, lambda f=f: rdmem(f, MFR(f)))
    PP, RR = (Q[7], Q[8]), (QA, Q[9])
    kland = {7: RR, 9: RR, 11: RR, 4: PP, 6: PP, 8: PP, 10: PP, 12: PP, 14: PP}
    at(T['c2'] + 4, lambda: rdw(Wk[7][1], *RR))
    at(6, lambda: rdw(Wk[4][1], *PP))
    for j in (7, 9, 4, 6, 8, 10, 12):
        at(4 * j + 1, lambda j=j: rdw(Wk[j + 2][1], *kland[j]))
    at(9, lambda: a(f"""
    s_mov_b32 s46, s48
    s_mov_b32 s47, s49
    s_add_u32 s97, s32, 1
    """))
    at(14, lambda: a(f"""
    s_lshl_b32 s48, s97, 19
    s_add_u32 s48, s48, s90
    s_add_u32 s49, s48, {(64 - LAG) << 19}
    """))
    at(16, lambda: a(f"""
    s_cmp_lt_u32 s97, {LAG}
    s_cselect_b32 s49, s48, s49
    """))
    at(18, lambda: a(f"""
    s_cmp_ge_u32 s32, 63
    s_cselect_b32 s48, s49, s48
    """ + ('s_mov_b32 s48, s90\ns_mov_b32 s49, s90' if opt.get('hotkv') else '')))
    at(28 + w, lambda: kxload(1, 0))
    at(38 + w, lambda: kxload(1, 1))
    at(45 + w // 2, lambda: kxload(0, 0))
    at(47 + w // 2, lambda: kxload(0, 1))
    at(58, lambda: a('s_xor_b32 s42, s42, 0x8000'))
    Q0_, Q1_ = Q[7], Q[8]
    def fire(n):
        for f in ev.pop(n, []):
            f()
    for j in range(15):
        m = q(MFR(j))
        c = lambda r: '0' if j == 0 else q(r)
        ka, kb = Wk[j][1] if Wk[j][0] == 'r' else kland[j]
        a(f'{MF} {q(Q[2])}, {q(ka)}, {m}, {c(Q[2])}'); fire(4*j)
        a(f'{MF} {q(Q[3])}, {q(kb)}, {m}, {c(Q[3])}'); fire(4*j + 1)
        a(f'{MF} {q(Q[0])}, {q(Wq[j][1][0])}, {m}, {c(Q[0])}'); fire(4*j + 2)
        a(f'{MF} {q(Q[1])}, {q(Wq[j][1][1])}, {m}, {c(Q[1])}'); fire(4*j + 3)
    assert not ev, ev.keys()
    for j in (15, 16, 17):
        a(f'{MF} {q(Q[0])}, {q(Wq[j][1][0])}, {q(MFR(j))}, {q(Q[0])}')
        a(f'{MF} {q(Q[1])}, {q(Wq[j][1][1])}, {q(MFR(j))}, {q(Q[1])}')
    km = []
    for j in (15, 16, 17):
        km.append(f'{MF} {q(Q[2])}, {q(Wk[j][1][0])}, {q(MFR(j))}, {q(Q[2])}')
        km.append(f'{MF} {q(Q[3])}, {q(Wk[j][1][1])}, {q(MFR(j))}, {q(Q[3])}')
    QF = Q[0]
    X0, X1, MM = KX[(0, 0)], KX[(0, 1)], Q[1]
    vq = packl(QF, Q[0], Q[1])
    vq += [f'v_cndmask_b32 v{Q0_+r}, 0, v{QF+r}, s[52:53]' for r in range(4)]
    vq += [f'v_cndmask_b32 v{Q1_+r}, 0, v{QF+r}, s[54:55]' for r in range(4)]
    vm_ = [f'v_mov_b32 v{MM}, 0xff800000', f'v_cndmask_b32 v{MM}, v{MM}, 0, s[56:57]',
           f'v_mov_b32 v{MM+1}, v{MM}', f'v_mov_b32 v{MM+2}, v{MM}', f'v_mov_b32 v{MM+3}, v{MM}']
    a(km[0]); a('s_nop 1'); a(km[1])
    for i in range(4):
        a(vq[2*i]); a(vq[2*i+1])
        if i >= 2:
            a(vm_.pop(0))
        a(km[2+i])
    tl(a, opt, 6)
    VA, VB = Q[0], Q[3]
    NPRE = opt.get('npre', 5)
    vorder = [15, 16, 17] + list(range(15))
    vstate = [0]
    def fill(n=1, limit=36):
        for _ in range(n):
            i = vstate[0]
            if i >= limit:
                return
            k = i // 2; j = vorder[k]; ab = i % 2
            m = q(MFR(j)); acc = q((VA, VB)[ab])
            a(f'{MF} {acc}, {m}, {q(Wv[j][1][ab])}, {"0" if i < 2 else acc}')
            if ab == 1 and k + 3 < 18 and (k + 3 < NPRE or k >= NPRE):
                rdmem(vorder[k + 3], MFR(j))
            vstate[0] += 1
    def V(lines, every=2):
        for i, l in enumerate(lines):
            a(l)
            if i % every == every - 1:
                fill()
    kp = packl(Q[2], Q[2], Q[3])
    a(vq[8]); a(vq[9]); a(vm_.pop(0))
    a(f'{MF} {q(X0)}, {q(X0)}, {q(Q0_)}, 0')
    a(vq[10]); a(vq[11]); a(vm_.pop(0))
    a(f'{MF} {q(X1)}, {q(X1)}, {q(Q0_)}, 0')
    a(kp[0]); a(kp[1]); a(vm_.pop(0))
    a(f'{MF} {q(X0)}, {q(KX[(1,0)])}, {q(Q1_)}, {q(X0)}')
    a(kp[2]); a(kp[3])
    a(f'{MF} {q(X1)}, {q(KX[(1,1)])}, {q(Q1_)}, {q(X1)}')
    a(f'{MF} {q(MM)}, {q(Q[2])}, {q(QF)}, {q(MM)}')
    VXo = [(0, 0), (0, 1), (1, 0), (1, 1)]
    VX = dict(zip(VXo, (Q[7], Q[8], Q[10], Q[11])))
    def vxload(k):
        c, ab = VXo[k]
        a(f'buffer_load_dwordx4 {q(VX[VXo[k]])}, v{L16}, s[12:15], s{46+c} offen offset:{2048 + ab*1024} sc1')
    LIM = 2 * NPRE
    fill(2, LIM)
    a(f'ds_write_b128 v{W1K}, {q(X0)} offset:{SREG}')
    fill(1, LIM)
    a(f'ds_write_b128 v{W1K}, {q(X1)} offset:{SREG + 4096}')
    fill(1, LIM)
    t = a(f'ds_write_b128 v{W1K}, {q(MM)} offset:{OREG}', tok=True)
    for k in range(4):
        fill(1, LIM); vxload(k)
    fill(1, LIM)
    if not opt.get('nokm'):
        a(f'buffer_store_dwordx4 {q(Q[2])}, v{L16}, s[12:15], s50 offen sc1')
    fill(9, LIM)
    a.wait_tok(t)
    a('s_barrier')
    tl(a, opt, 7)
    F = [Q[4], Q[5], Q[6], Q[2]]
    def rds(A, which, dst):
        off = (SREG, SREG + 4096, OREG)[which]
        a(f'ds_read_b128 {q(dst)}, v{A} offset:{off}')
    SUM = (X0, X1, MM)
    seq = [(A, k) for A in (A1, A2, A3) for k in range(3)]
    nxt = [MFR(vorder[NPRE + i]) for i in range(3)]
    land = [Q[2], nxt[0], nxt[1], nxt[2], Q[2], nxt[0], nxt[1], nxt[2], Q[2]]
    for i in range(4):
        rds(*seq[i], land[i])
    for i in range(9):
        d, s_ = SUM[seq[i][1]], land[i]
        a(f'v_pk_add_f32 {q(d,2)}, {q(d,2)}, {q(s_,2)}')
        a(f'v_pk_add_f32 {q(d+2,2)}, {q(d+2,2)}, {q(s_+2,2)}')
        if i + 4 < 9:
            rds(*seq[i + 4], land[i + 4])
        elif i < 8:
            rdmem(vorder[NPRE + i - 5], nxt[i - 5])
    U0, U1, U2 = Q[2], Q[2] + 2, Q[2] + 3
    tl(a, opt, 8)
    def slow():
        if not opt.get('noprefetch'):
            a(f's_sub_u32 s98, s49, s48')
            a(f's_sub_u32 s98, s98, 4096')
            a(f'v_lshlrev_b32 v{U0}, 3, v{L16}')
            a('s_mov_b32 exec_lo, 0')
            a(f'v_add_u32 v{U0}, s98, v{U0}')
            a('s_mov_b32 exec_lo, -1')
            a(f'buffer_load_dword v{U0}, s[12:15], s48 offen sc1 lds')
        if not opt.get('nokm'):
            a(f"""
            v_mov_b32 v{U0+1}, s32
            s_mov_b64 exec, 1
            buffer_store_dword v{U0+1}, off, s[12:15], s69 sc1
            s_mov_b64 exec, -1
            """)
    a(f'v_max3_f32 v{U1}, v{X0}, v{X0+1}, v{X0+2}')
    a(f'v_max3_f32 v{U2}, v{X0+3}, v{X1}, v{X1+1}')
    fill(1)
    a(f'v_max3_f32 v{U1}, v{U1}, v{X1+2}, v{X1+3}')
    a(f'v_max3_f32 v{U2}, v{U2}, v{MM}, v{MM+1}')
    fill(1)
    a(f'v_max3_f32 v{U1}, v{U1}, v{MM+2}, v{MM+3}')
    a(f'v_max_f32 v{U1}, v{U1}, v{U2}')
    fill(1)
    a(f'v_mov_b32 v{U2}, v{U1}')
    fill(1)
    a(f'v_permlane16_swap_b32 v{U1}, v{U2}')
    fill(1)
    a(f'v_max_f32 v{U1}, v{U1}, v{U2}')
    a(f'v_mov_b32 v{U2}, v{U1}')
    fill(1)
    a(f'v_permlane32_swap_b32 v{U1}, v{U2}')
    fill(1)
    a(f'v_max_f32 v{U1}, v{U1}, v{U2}')
    a(f'v_mul_f32 v{U1}, s60, v{U1}')
    fill(1)
    vals = [X0+i for i in range(4)] + [X1+i for i in range(4)] + [MM+i for i in range(4)]
    L = [f'v_fma_f32 v{r}, v{r}, s60, -v{U1}' for r in vals]
    V(L[:2*(w+1)], 2); slow(); V(L[2*(w+1):], 2)
    V([f'v_exp_f32 v{r}, v{r}' for r in vals], 1)
    fill(36)
    tl(a, opt, 9)
    a('s_barrier')
    S4 = Q[4]
    a(f'v_add_f32 v{S4}, v{X0}, v{X0+1}')
    a(f'v_add_f32 v{S4+1}, v{X0+2}, v{X0+3}')
    a(f'v_add_f32 v{S4+2}, v{MM}, v{MM+1}')
    a(f'v_add_f32 v{S4+3}, v{MM+2}, v{MM+3}')
    a(f'v_cvt_pk_bf16_f32 v{MM}, v{MM}, v{MM+1}')
    a(f'v_cvt_pk_bf16_f32 v{MM+1}, v{MM+2}, v{MM+3}')
    pack(VA, VA, VB)
    MA, MB = Q[5], Q[6]
    pp = packl(X0, X0, X1)
    a(pp[0])
    a(f'{MF16} {q(MA)}, {q(VA,2)}, {q(MM,2)}, 0')
    a(pp[1]); a(pp[2])
    a(f'{MF16} {q(MB)}, {q(VA+2,2)}, {q(MM,2)}, 0')
    a(pp[3])
    a(f'v_add_f32 v{U1}, v{X1}, v{X1+1}')
    a(f'v_add_f32 v{U2}, v{X1+2}, v{X1+3}')
    a(f'{MF} {q(VX[(0,0)])}, {q(VX[(0,0)])}, {q(X0)}, {q(MA)}')
    a(f'v_add_f32 v{S4}, v{S4}, v{S4+1}')
    a(f'v_add_f32 v{S4+2}, v{S4+2}, v{S4+3}')
    a(f'{MF} {q(VX[(0,1)])}, {q(VX[(0,1)])}, {q(X0)}, {q(MB)}')
    a(f'v_add_f32 v{U1}, v{U1}, v{U2}')
    a(f'v_add_f32 v{S4}, v{S4}, v{S4+2}')
    a(f'{MF} {q(VX[(1,0)])}, {q(VX[(1,0)])}, {q(X0)}, {q(MA)}')
    a(f'v_add_f32 v{U1}, v{U1}, v{S4}')
    a(f'v_mov_b32 v{U2}, v{U1}')
    a(f'{MF} {q(VX[(1,1)])}, {q(VX[(1,1)])}, {q(X0)}, {q(MB)}')
    a(f'v_permlane16_swap_b32 v{U1}, v{U2}')
    a(f'v_add_f32 v{U1}, v{U1}, v{U2}')
    a(f'v_mov_b32 v{U2}, v{U1}')
    a(f'v_permlane32_swap_b32 v{U1}, v{U2}')
    a(f'v_add_f32 v{U1}, v{U1}, v{U2}')
    a(f'v_rcp_f32 v{U1}, v{U1}')
    a(f'v_cndmask_b32 v{U2}, 0, v{U1}, s[54:55]')
    a(f'v_cndmask_b32 v{U1}, 0, v{U1}, s[52:53]')
    for ab in range(2):
        for hh in (0, 2):
            r = VX[(0, ab)] + hh
            a(f'v_pk_mul_f32 {q(r,2)}, {q(r,2)}, {q(U1,2)} op_sel_hi:[1,0]')
    for ab in range(2):
        for hh in (0, 2):
            r = VX[(0, ab)] + hh; r1 = VX[(1, ab)] + hh
            a(f'v_pk_fma_f32 {q(r,2)}, {q(r1,2)}, {q(U1,2)}, {q(r,2)} op_sel:[0,1,0] op_sel_hi:[1,1,1]')
    OO = VX[(0, 0)]
    pack(OO, VX[(0, 0)], VX[(0, 1)])
    t = a(f'ds_write_b128 v{W1K}, {q(OO)} offset:{OREG}', tok=True)
    if not opt.get('nokm'):
        a(f'buffer_store_dwordx4 {q(VA)}, v{L16}, s[12:15], s50 offen offset:1024 sc1')
    WL = [Q[4], Q[5], Q[6], X1]
    ACC = {0: (Q[10], Q[11]), 1: (Q[1], Q[3]), 2: (Q[10], Q[11]), 3: (Q[1], Q[3]), 4: (Q[0], None)}
    rdw(Wo[(0, 1)][1], WL[0], WL[1])
    rdw(Wo[(0, 2)][1], *ACC[1])
    rdw(Wo[(0, 3)][1], WL[2], WL[3])
    a(f's_cmp_eq_u32 s32, {NSTEP - 1}')
    a('s_cbranch_scc1 L_cdone', noflush=True)
    a.wait_tok(t)
    a('s_barrier')
    tl(a, opt, 10)
    OF = [Q[8], X0, Q[2], Q[7]]
    for ks in range(4):
        a(f'ds_read_b128 {q(OF[ks])}, v{L16} offset:{OREG + ks*1024}')
    def flush_lines(g):
        A, B = ACC[g]
        if g < 4:
            return packl(A, A, B) + [f'v_bfi_b32 v{A}, 1, s45, v{A}', f'v_bfi_b32 v{A+2}, 1, s45, v{A+2}',
                                     f'buffer_store_dwordx4 {q(A)}, v{L16}, s[12:15], s{33+g} offen']
        return [f'v_cvt_pk_bf16_f32 v{A}, v{A}, v{A+1}', f'v_cvt_pk_bf16_f32 v{A+1}, v{A+2}, v{A+3}',
                f'v_bfi_b32 v{A}, 1, s45, v{A}', f'buffer_store_dwordx2 {q(A,2)}, v{L16}, s[12:15], s37 offen']
    late = w in opt.get('late', ())
    RL1 = [Q[7], Q[8], QA, Q[9]] if late else WL
    RL2 = OF
    def rload_lines(extra, RL):
        out = []
        for i in range(4):
            if extra:
                out.append(f's_add_u32 s98, s{38+i}, {extra}\nbuffer_load_dwordx4 {q(RL[i])}, v{RED}, s[12:15], s98 offen sc1')
            else:
                out.append(f'buffer_load_dwordx4 {q(RL[i])}, v{RED}, s[12:15], s{38+i} offen sc1')
        return out
    def rloads(extra, RL):
        for l in rload_lines(extra, RL):
            a(l)
    mf = []
    wev = {}
    def wat(n, l):
        wev.setdefault(n, []).append(l)
    for g in (0, 4, 1, 2, 3):
        A, B = ACC[g]
        for ks in range(4):
            c = lambda r: '0' if ks == 0 else q(r)
            if g < 4:
                kind, ww = Wo[(g, ks)]
                if kind == 'l':
                    ww = {1: (WL[0], WL[1]), 2: ACC[1], 3: (WL[2], WL[3])}[ks]
                mf.append(f'{MF} {q(A)}, {q(ww[0])}, {q(OF[ks])}, {c(A)}')
                mf.append(f'{MF} {q(B)}, {q(ww[1])}, {q(OF[ks])}, {c(B)}')
                if kind == 'l' and (g + 1, ks) in OL:
                    off = Wo[(g + 1, ks)][1]
                    wat(len(mf) - 1, f'ds_read_b128 {q(ww[0])}, v{LW} offset:{off}\nds_read_b128 {q(ww[1])}, v{LW} offset:{off+1024}')
            else:
                mf.append(f'{MF} {q(A)}, {q(Wo4[ks])}, {q(OF[ks])}, {c(A)}')
        e = len(mf) - 1
        fl = flush_lines(g)
        st = fl.pop()
        base = e + 2 if g != 4 else e + 3
        wat(e + 1, 's_nop 1')
        for i, l in enumerate(fl):
            wat(base + i // 2, l)
        wat(base + (len(fl) - 1) // 2 + (0, 1, 1, 2)[w], st)
    early = (w == 0 and opt.get('early0', 28) is not None)
    if early:
        for i, l in enumerate(rload_lines(0, RL1)):
            wat(opt.get('early0', 28) + i, l)
    for n, m in enumerate(mf):
        a(m)
        for l in wev.pop(n, []):
            a(l)
        if n == 19: tl(a, opt, 11)
        if n == 27: tl(a, opt, 12)
    for n in sorted(wev):
        for l in wev[n]:
            if not l.startswith('s_nop'):
                a(l)
    tl(a, opt, 13)
    rtail = []
    def rproc(extra, D, RL):
        Lc, Lr, Lp = a.newlabel('L_rc'), a.newlabel('L_rr'), a.newlabel('L_rp')
        a.label(Lc)
        for i in range(4):
            a(f'{MF} {q(D)}, {q(SEL)}, {q(RL[i])}, {"0" if i == 0 else q(D)}')
            a(f'v_bitop3_b32 v{RL[i]}, v{RL[i]}, v{RL[i]+2}, s45 bitop3:0x7e')
        T_ = RL[0]
        a(f"""
        v_or3_b32 v{T_}, v{RL[0]}, v{RL[1]}, v{RL[2]}
        v_or_b32 v{T_}, v{T_}, v{RL[3]}
        v_and_b32 v{T_}, 1, v{T_}
        v_cmp_ne_u32 vcc, 0, v{T_}
        s_or_b32 s98, s96, s32
        s_cmp_eq_u32 s98, {0x80000000 | (LAG - 1)}
        """)
        if not extra: tl(a, opt, 14)
        for r in range(4):
            a(f'v_add_f32 v{D+r}, v{D+r}, v{D+r} row_ror:8 row_mask:0xf bank_mask:0xf')
        a(f's_cbranch_vccnz {Lr}', noflush=True)
        a(f'v_cvt_pk_bf16_f32 v{D}, v{D}, v{D+1}')
        a(f'v_cvt_pk_bf16_f32 v{D+1}, v{D+2}, v{D+3}')
        a(f's_cbranch_scc1 {Lp}m', noflush=True)
        a.label(Lp)
        if extra:
            a(f's_add_u32 s98, s43, {extra}\ns_add_u32 s99, s44, {extra}')
        a(f"""
        s_mov_b64 exec, s[58:59]
        buffer_store_dwordx2 {q(D,2)}, v{PUB}, s[12:15], {'s98' if extra else 's43'} offen
        v_mov_b32 v{D+2}, -1
        v_mov_b32 v{D+3}, -1
        buffer_store_dwordx2 {q(D+2,2)}, v{PUB}, s[12:15], {'s99' if extra else 's44'} offen
        s_mov_b64 exec, -1
        """)
        rtail.append((Lc, Lr, Lp, extra, D, RL))
        if not extra: tl(a, opt, 15)
    dr = opt.get('dred', (0, 0, 120, 280))[w]
    dg = opt.get('dg0', (60, 0, 0, 0))[w]
    dg1 = opt.get('dg1', (150, 150, 150, 150))[w]
    D1, D2 = Q[0], Q[3]
    if w == 0:
        if not early:
            delay(a, dr)
            rloads(0, RL1)
        a(f's_cmp_lg_u32 s68, 0\ns_cbranch_scc1 L_nod2', noflush=True)
        rloads(16384, RL2)
        rproc(0, D1, RL1)
        rproc(16384, D2, RL2)
        delay(a, max(0, dg - opt.get('d2cost', 160)))
        a('s_branch L_d2j')
        a.label('L_nod2')
        rproc(0, D1, RL1)
        delay(a, dg)
        a.label('L_d2j')
        gissue(0)
        g0_handle()
    elif late:
        delay(a, dr)
        rloads(0, RL1)
        delay(a, dg)
        gissue(0)
        g0_handle()
        rproc(0, D1, RL1)
    else:
        g0first = w in opt.get('g0first', ())
        delay(a, dr)
        rloads(0, RL1)
        if g0first:
            delay(a, dg)
            gissue(0)
            rproc(0, D1, RL1)
        else:
            rproc(0, D1, RL1)
            delay(a, dg)
            gissue(0)
        g0_handle()
    a(f"""
    s_add_u32 s32, s32, 1
    s_xor_b32 s45, s45, 1
    s_add_u32 s50, s50, {32*8192}
    s_xor_b32 s43, s43, 0x8000
    s_xor_b32 s44, s44, 0x8000
    """)
    tl(a, opt, 16)
    tl_dump(a, opt, 32, 51, Q[8])
    a(f's_branch {LOOP}')
    for Lr, Lb, g in tail:
        a.label(Lr)
        if dev:
            a(f's_add_u32 s{17+g}, s{17+g}, 1')
        a('s_sub_u32 s100, s100, 1\ns_cbranch_scc1 L_end')
        gissue(g)
        gcmp(g)
        a('s_or_b64 vcc, vcc, s[94:95]')
        a(f's_cbranch_scc1 {Lr}')
        gwrite(g)
        a('s_waitcnt lgkmcnt(0)')
        a(f's_branch {Lb}')
    for Lc, Lr, Lp, extra, D_, RL in rtail:
        a.label(Lr)
        if dev:
            a(f's_add_u32 s{25 if extra else 24}, s{25 if extra else 24}, 1')
        rloads(extra, RL)
        a('s_waitcnt vmcnt(0)')
        spin_tail(a, Lc)
        a.label(Lp + 'm')
        mem0_line(D_, RL[0], extra)
        a('s_waitcnt vmcnt(0)')
        a(f's_branch {Lp}')

def chain_role(a, opt):
    QA = 12
    Q = [16 + 4*i for i in range(12)]
    L16, W1K, RED, PUB, LW, A1, A2, A3, SEL = 0, 1, 2, 3, 4, 5, 6, 7, 8
    MEM, SREG, OREG = 0, 18432, 26624
    dev = opt.get('total')
    a.label('L_chain')
    srd(a, 16, 16, 576*4096*2)
    srd(a, 20, 24, 576*4096*2)
    srd(a, 24, 32, 576*4096*2)
    srd(a, 28, 40, 4096*576*2)
    srd(a, 64, 8, 8*576*2)
    a(f"""
    v_lshlrev_b32 v{L16}, 4, v63
    s_lshl_b32 s32, s9, 10
    v_add_u32 v{W1K}, s32, v{L16}
    v_xor_b32 v{A1}, 0x400, v{W1K}
    v_xor_b32 v{A2}, 0x800, v{W1K}
    v_xor_b32 v{A3}, 0xc00, v{W1K}
    v_lshrrev_b32 v60, 3, v63
    v_mul_u32_u24 v{RED}, {PS}, v60
    v_and_b32 v61, 7, v63
    v_lshl_add_u32 v{RED}, v61, 4, v{RED}
    v_bfe_u32 v60, v63, 4, 1
    v_lshlrev_b32 v{PUB}, 4, v61
    v_lshl_add_u32 v{PUB}, v60, 3, v{PUB}
    s_add_u32 s62, s9, 1
    s_lshl_b32 s62, s62, 15                ; lds weight area of this wave
    v_add_u32 v{LW}, s62, v{L16}
    s_mov_b32 s52, 0x00ff00ff
    s_mov_b32 s53, 0x00ff00ff
    s_mov_b32 s54, 0xff00ff00
    s_mov_b32 s55, 0xff00ff00
    s_mov_b32 s56, 0x00ff00ff
    s_mov_b32 s57, 0xff00ff00
    s_mov_b32 s58, 0x00ff00ff
    s_mov_b32 s59, 0
    s_mov_b32 s60, {f2u(math.log2(math.e)/math.sqrt(128.0))}
    s_mov_b32 s61, s60
    s_mul_i32 s33, s10, {PS}
    s_add_u32 s33, s33, {CH_P}
    s_lshr_b32 s37, s9, 1
    s_add_u32 s37, s37, 16
    s_lshl_b32 s37, s37, 10
    s_and_b32 s32, s9, 1
    s_lshl_b32 s32, s32, 3
    s_add_u32 s37, s37, s32
    s_add_u32 s37, s37, s33
    s_lshl_b32 s32, s9, 10
    s_add_u32 s33, s33, s32
    s_add_u32 s34, s33, 4096
    s_add_u32 s35, s33, 8192
    s_add_u32 s36, s33, 12288
    s_lshl_b32 s63, s9, 5
    s_add_u32 s63, s63, s10                ; line
    s_lshl_b32 s63, s63, 7                 ; line*128
    s_add_u32 s38, s63, {CH_P}
    s_add_u32 s39, s38, {8*PS}
    s_add_u32 s40, s38, {16*PS}
    s_add_u32 s41, s38, {24*PS}
    s_lshr_b32 s68, s10, 4
    s_or_b32 s68, s68, s9
    """)
    sel_matrix(a, SEL)

    def mem0_line(dst, tmp, extra=0):
        a(f"""
        s_add_u32 s98, s63, {extra}
        s_lshr_b32 s98, s98, 8
        s_lshl_b32 s98, s98, 4
        v_lshrrev_b32 v{tmp}, 4, v{PUB}
        v_mul_u32_u24 v{tmp}, 1152, v{tmp}
        v_and_b32 v{tmp+1}, 8, v{PUB}
        v_add_u32 v{tmp}, v{tmp}, v{tmp+1}
        buffer_load_dwordx2 v[{dst}:{dst+1}], v{tmp}, s[64:67], s98 offen
        """)

    for r in range(4):
        a(f'v_mov_b32 v{Q[0]+r}, 1')
        a(f'v_mov_b32 v{Q[1]+r}, -1')
    for g in range(4):
        a(f'buffer_store_dwordx4 {q(Q[0])}, v{L16}, s[12:15], s{33+g} offen')
    a(f'buffer_store_dwordx2 {q(Q[0],2)}, v{L16}, s[12:15], s37 offen')
    for extra in (0, 16384):
        Ls = a.newlabel('L_ci')
        if extra:
            a(f's_cmp_lg_u32 s68, 0\ns_cbranch_scc1 {Ls}')
        mem0_line(Q[2], QA, extra)
        a(f"""
        s_add_u32 s98, s63, {CH_M + extra}
        s_add_u32 s99, s63, {CH_M + 0x8000 + extra}
        s_mov_b64 exec, s[58:59]
        buffer_store_dwordx2 {q(Q[2],2)}, v{PUB}, s[12:15], s98 offen
        buffer_store_dwordx2 {q(Q[1],2)}, v{PUB}, s[12:15], s99 offen
        s_mov_b64 exec, -1
        s_waitcnt vmcnt(0)
        {Ls}:
        """)
    a(f"""
    s_lshl_b32 s51, s10, 2
    s_add_u32 s51, s51, s9
    s_lshl_b32 s51, s51, 2                 ; (h*4+w)*4
    s_add_u32 s69, s51, {FLAGS + F_C*4}
    v_mov_b32 v60, 0
    s_mov_b64 exec, 1
    buffer_store_dword v60, off, s[12:15], s69 sc1
    s_mov_b64 exec, -1
    """)
    arrive(a)

    VT, VO1, VO2, VT1 = Q[8], Q[8]+1, Q[8]+2, Q[8]+3
    lane_consts_loader(a, VT, 62)
    dma_voff(a, VO1, 8192)
    dma_voff(a, VO2, 1152)
    a(f"""
    s_and_b32 s98, s9, 1
    s_lshl_b32 s98, s98, 3
    v_add_u32 v{VT1}, s98, v{VT}
    s_lshl_b32 s42, s10, 8
    s_lshl_b32 s98, s9, 6
    s_add_u32 s42, s42, s98
    s_mul_i32 s43, s10, {128*1152}
    s_add_u32 s44, s43, 1024
    s_lshr_b32 s99, s9, 1
    s_lshl_b32 s99, s99, 6
    s_add_u32 s44, s44, s99
    s_add_u32 s43, s43, s98
    """)
    free = list(range(256, 512, 4)) + list(range(64, 256, 4))
    def alloc():
        return free.pop(0)
    Wq, Wk, Wv, Wo, Wo4 = {}, {}, {}, {}, {}
    regblocks, ldsblocks = [], []
    def blk(tab, key, srdn, voff, sbase, off, pitch, inlds):
        b = dict(srd=srdn, voff=voff, sbase=sbase, off=off, pitch=pitch)
        if inlds:
            b['dst'] = 'lds'
            b['key'] = (tab, key)
            ldsblocks.append(b)
        else:
            b['dst'] = [alloc(), alloc()]
            tab[key] = ('r', b['dst'])
            regblocks.append(b)
    KL = (4, 6, 7, 8, 9, 10, 11, 12, 14)
    OL = ((0, 1), (0, 2), (0, 3), (1, 1), (1, 3), (2, 1), (2, 3))
    for j in range(18):
        blk(Wq, j, 16, VO1, 42, j*32*8192, 8192, False)
        blk(Wk, j, 20, VO1, 42, j*32*8192, 8192, j in KL)
    for j in range(18):
        blk(Wv, j, 24, VO1, 42, j*32*8192, 8192, False)
    for g in range(4):
        for ks in range(4):
            blk(Wo, (g, ks), 28, VO2, 43, ks*32*1152 + g*256, 1152, (g, ks) in OL)
    for ks in range(4):
        b = dict(srd=28, voff=VO2, sbase=44, off=ks*32*1152, pitch=1152, dst=[alloc()], v_tr=VT1)
        Wo4[ks] = b['dst'][0]
        regblocks.append(b)
    assert not free and len(ldsblocks) == 16
    for k, b in enumerate(ldsblocks):
        tab, key = b['key']
        tab[key] = ('l', ((len(regblocks) + k) % 16) * 2048)
    Loader(a, 16, 62, VT, Q[0]).run(regblocks + ldsblocks, v_lin=LW)
    a('s_waitcnt lgkmcnt(0)')
    wait_arrivals(a, opt['narrive'])

    a(f"""
    s_mov_b32 s32, 0
    s_mov_b32 s45, 0
    s_lshl_b32 s98, s10, 14
    s_lshl_b32 s99, s9, 12
    s_add_u32 s98, s98, s99
    s_add_u32 s90, s98, {KVB}              ; KV[0][0][h] + w*4096
    s_lshl_b32 s98, s10, 13
    s_lshl_b32 s99, s9, 11
    s_add_u32 s50, s98, s99
    s_add_u32 s50, s50, {KMB}              ; KM[t][h] + w*2048
    s_mov_b32 s48, s90
    s_mov_b32 s49, s90
    s_lshl_b32 s98, s9, 10
    s_add_u32 s42, s98, {CH_M}
    s_and_b32 s98, s9, 1
    s_lshl_b32 s98, s98, 10
    s_add_u32 s91, s98, {CH_M + 16384}
    s_add_u32 s44, s63, {CH_M}
    s_add_u32 s43, s63, {CH_M + 0x8000}
    s_lshl_b32 s96, s10, 31                ; chain-2 start detector
    s_mov_b32 m0, 30720
    """)
    assert CH_M % 0x10000 == 0
    if dev:
        for i in range(10):
            a(f's_mov_b32 s{16+i}, 0')
    a('s_setprio 3')
    if dev:
        a('s_memtime s[92:93]\ns_waitcnt lgkmcnt(0)')
    for w in range(1, 4):
        a(f's_cmp_eq_u32 s9, {w}\ns_cbranch_scc1 L_cst{w}')
    for w in range(4):
        a.label(f'L_cst{w}')
        chain_loop(a, opt, w, dict(Wq=Wq, Wk=Wk, Wv=Wv, Wo=Wo, Wo4=Wo4, OL=OL, mem0_line=mem0_line))
    a.label('L_cdone')
    a(f"""
    s_waitcnt vmcnt(0)
    v_mov_b32 v{Q[8]}, {NSTEP}
    s_mov_b64 exec, 1
    buffer_store_dword v{Q[8]}, off, s[12:15], s69 sc1
    """)
    if dev:
        a('s_memtime s[94:95]\ns_waitcnt lgkmcnt(0)\ns_sub_u32 s23, s94, s92')
        a(f's_lshl_b32 s98, s51, 4\ns_add_u32 s98, s98, {DBGW}')
        for i in range(10):
            a(f'v_mov_b32 v{Q[8]}, s{16+i}')
            a(f'buffer_store_dword v{Q[8]}, off, s[12:15], s98 offset:{4*i}')
    a('s_branch L_end')

import struct
def f2u(f):
    return '0x%08x' % struct.unpack('<I', struct.pack('<f', f))[0]

def build(**opt):
    a = Asm()
    prologue(a)
    roles = opt.get('roles', ('chain',))
    a('s_cmp_eq_u32 s8, 0')
    a('s_cbranch_scc1 L_chain' if 'chain' in roles else 's_cbranch_scc1 L_end')
    a('s_branch L_end')
    if 'chain' in roles:
        chain_role(a, opt)
    a.label('L_end')
    a('s_endpgm')
    body = a.finish([K])
    return f'''; @launch grid=(256,1,1) block=(256,1,1) lds=163840
.amdgcn_target "amdgcn-amd-amdhsa--gfx950"
.text
.globl {K}
.p2align 8
.type {K},@function
{body}.section .rodata,"a"
.p2align 6
{kernel_desc(K)}'''

if __name__ == '__main__':
    base = dict(roles=('chain',), narrive=32, total=True, nokm=True, hotkv=True, noprefetch=True)
    V = {
     'a': dict(early0=28, dred=(0,0,0,0), dg0=(0,0,0,0)),
     'b': dict(early0=32, dred=(0,0,0,100), dg0=(200,0,0,0)),
     'c': dict(early0=None, dred=(0,0,0,100), dg0=(200,100,0,0)),
     'd': dict(early0=32, dred=(0,0,100,200), dg0=(200,0,0,0), g0first=(1,2,3)),
     'e': dict(early0=32, dred=(0,0,100,200), dg0=(200,300,200,100), g0first=(1,2,3)),
     'f': dict(early0=32, dred=(0,0,100,200), dg0=(300,0,0,0), gpre=(1,2,4)),
     'g': dict(early0=32, dred=(0,0,100,300), dg0=(300,0,0,0), T=dict(g2=2, g3=8)),
    }
    for k, v in V.items():
        open(f'cv_{k}t.s', 'w').write(build(**base, **v))
    open('ch3t.s', 'w').write(build(roles=('chain',), narrive=32, total=True, **V['b']))
    b2 = dict(base); del b2['total']
    open('ch3c.s', 'w').write(build(**b2, tl=40, **V['b']))
```
